```python
import torch

def _softmax(x, axis=-1):
    return torch.softmax(x, dim=axis)
def _gelu(x):
    return torch.nn.functional.gelu(x, approximate="tanh")
def _silu(x):
    return torch.nn.functional.silu(x)
def _sigmoid(x):
    return torch.sigmoid(x)
def _layernorm(x, axis=-1, eps=1e-5):
    m = x.mean(dim=axis, keepdim=True)
    v = x.var(dim=axis, keepdim=True, unbiased=False)
    return (x - m) / torch.sqrt(v + eps)
def _scatter_add(tgt, idx, src, axis=0):
    return tgt.clone().index_add_(axis, idx, src)
def _segment_sum(src, seg, n):
    out = torch.zeros((n,) + src.shape[1:], dtype=src.dtype)
    return out.index_add_(0, seg, src)
def _pad(x, pw):
    flat = tuple(v for pair in reversed(pw) for v in pair)
    return torch.nn.functional.pad(x, flat)

kernel_name = 'standalone__gqa_softmax__near_ridge'

def setup_inputs():

    _w = (lambda a: (lambda t: t.to(torch.bfloat16) if t.is_floating_point() else t)(torch.as_tensor(a)))
    B, Hq, Hkv, Sq, Sk, D = 16, 32, 32, 736, 512, 128
    return {
        "q": _w((lambda *s: torch.randn(*s, dtype=torch.bfloat16) * 0.8)(B, Hq, Sq, D)),
        "k": _w((lambda *s: torch.randn(*s, dtype=torch.bfloat16) * 0.8)(B, Hkv, Sk, D)),
        "v": _w((lambda *s: torch.randn(*s, dtype=torch.bfloat16) * 0.05)(B, Hkv, Sk, D)),
    }

def reference(q, k, v):
    B, Hq, Sq, D = q.shape
    Hkv = k.shape[1]
    rep = Hq // Hkv
    k = (lambda x, n, axis: torch.repeat_interleave(x, n, dim=axis))(k, rep, axis=1)
    v = (lambda x, n, axis: torch.repeat_interleave(x, n, dim=axis))(v, rep, axis=1)
    scale = D ** -0.5
    scores = torch.einsum("bhqd,bhkd->bhqk", q, k) * scale
    p = _softmax(scores, axis=-1)
    return torch.einsum("bhqk,bhkd->bhqd", p, v)
```

```python
import re

TRANS = ('v_exp_f32', 'v_rcp_f32', 'v_log_f32', 'v_rsq_f32', 'v_sqrt_f32')

def regs_of(tok):
    tok = tok.strip()
    if tok.startswith('-'): tok = tok[1:]
    tok = tok.strip('|')
    m = re.fullmatch(r'([vas])\[(\d+):(\d+)\]', tok)
    if m: return [(m.group(1), i) for i in range(int(m.group(2)), int(m.group(3)) + 1)]
    m = re.fullmatch(r'([vas])(\d+)', tok)
    if m: return [(m.group(1), int(m.group(2)))]
    if tok == 'vcc': return [('s', 'vcc')]
    if tok == 'm0': return [('s', 'm0')]
    if tok == 'exec': return [('s', 'exec')]
    return []

class I:
    def __init__(self, text, **kw):
        self.text = text
        self.region = kw.get('region'); self.ver = kw.get('ver', 0); self.shared = kw.get('shared', True)
        self.need = kw.get('need')
        self.lgkm = kw.get('lgkm')
        self.vm = None
        self.verkind = kw.get('verkind', 'step')
        t = text.split(';')[0].strip()
        self.label = t.endswith(':')
        self.directive = t.startswith('.')
        parts = t.split(None, 1)
        self.op = parts[0] if parts else ''
        rest = parts[1] if len(parts) > 1 else ''
        ops = [o.strip() for o in rest.split(',')] if rest else []
        mods = ''
        if ops:
            l = ops[-1].split(None, 1)
            ops[-1] = l[0]; mods = l[1] if len(l) > 1 else ''
        self.ops = ops; self.mods = mods
        op = self.op
        self.w = []; self.r = []; self.kind = 'other'
        R = lambda k: regs_of(ops[k]) if k < len(ops) else []
        if self.label or self.directive or op == '':
            self.kind = 'none'
        elif op.startswith('v_mfma'):
            self.kind = 'mfma'; self.w = R(0); self.A = R(1); self.B = R(2); self.C = R(3); self.r = self.A + self.B + self.C
            self.passes = 8 if '32x32' in op else 4
        elif op.startswith('v_'):
            self.kind = 'valu'
            if 'permlane' in op and 'swap' in op:
                self.w = R(0) + R(1); self.r = R(0) + R(1)
            else:
                self.w = R(0); self.r = [x for k in range(1, len(ops)) for x in R(k)]
                if op.startswith('v_fmac') or op.startswith('v_dot2c') or 'dpp' in mods or 'row_' in mods or 'quad_perm' in mods: self.r += R(0)
            self.trans = op.replace('_e32', '').replace('_e64', '') in TRANS
            self.dpp = ('row_' in mods or 'quad_perm' in mods)
        elif op.startswith('ds_read'):
            self.kind = 'ds'; self.w = R(0); self.r = R(1)
        elif op.startswith('ds_write'):
            self.kind = 'ds'; self.r = R(0) + R(1) + R(2)
        elif op.startswith('ds_bpermute') or op.startswith('ds_swizzle'):
            self.kind = 'ds'; self.w = R(0); self.r = R(1) + R(2)
        elif op.startswith('buffer_load'):
            self.kind = 'vmem'
            self.lds = bool(re.search(r'\blds\b', mods))
            if self.lds: self.r = R(0) + R(1) + R(2) + [('s', 'm0')]
            else: self.w = R(0); self.r = R(1) + R(2) + R(3)
        elif op.startswith('buffer_store'):
            self.kind = 'vmem'; self.lds = False; self.store = True; self.data = R(0); self.r = R(0) + R(1) + R(2) + R(3)
        elif op == 's_waitcnt': self.kind = 'wait'
        elif op == 's_barrier': self.kind = 'barrier'
        elif op == 's_nop': self.kind = 'nop'
        elif op.startswith('s_load') or op.startswith('s_memtime') or op.startswith('s_memrealtime'):
            self.kind = 'smem'; self.w = R(0); self.r = R(1)
        elif op.startswith('s_cbranch') or op in ('s_branch', 's_endpgm', 's_setprio'):
            self.kind = 'salu'
        elif op.startswith('s_cmp') or op.startswith('s_bitcmp'):
            self.kind = 'salu'; self.r = R(0) + R(1)
        elif op.startswith('s_'):
            self.kind = 'salu'; self.w = R(0); self.r = [x for k in range(1, len(ops)) for x in R(k)]
            if 'saveexec' in op: self.w += [('s', 'exec')]
            if op.startswith('s_bitset') or op.startswith('s_addk') or op.startswith('s_cmov'): self.r += R(0)
        else:
            raise ValueError('unknown op ' + text)
    def slots(self):
        if self.kind == 'none': return 0
        if self.kind == 'nop': return int(self.ops[0]) + 1
        return 1
    def render(self):
        if self.need is not None:
            s = f's_waitcnt vmcnt({self.vm})'
            if self.lgkm is not None: s += f' lgkmcnt({self.lgkm})'
            return s
        return self.text

def W(need, lgkm=None, verkind='step'):
    return I('s_waitcnt vmcnt(0)', need=need, lgkm=lgkm, verkind=verkind)

def resolve_waits(trace):
    q = []
    for ins, ctx in trace:
        if ins.kind == 'vmem':
            q.append((ins.region, None if ins.region is None else ins.ver + ctx[ins.verkind]))
        elif ins.need is not None:
            last = -1
            for (rg, vr, vk) in ins.need:
                want = (rg, vr + ctx[vk])
                idx = [k for k, x in enumerate(q) if x == want]
                assert idx, ('wait for something never issued', want, ctx)
                last = max(last, idx[-1])
            n = min(63, len(q) - 1 - last)
            ins.vm = n if ins.vm is None else min(ins.vm, n)

def check(trace, verbose=False):
    errs = []
    hist = []
    ds_q = []
    vm_q = []
    sm_pending = set()
    content = {}
    readers = {}
    def err(msg, ins, k): errs.append(f'[{k}] {msg}: {ins.render()}')
    for k, (ins, ctx) in enumerate(trace):
        if ins.kind == 'none': continue
        touched = set(ins.r) | set(ins.w)
        d = 0
        for p in reversed(hist):
            if d >= 20: break
            need = 0; why = ''
            pw = set(p.w)
            if p.kind == 'valu':
                vw = {x for x in pw if x[0] in 'va'}; sw = {x for x in pw if x[0] == 's'}
                if ins.kind == 'mfma' and vw & set(ins.r): need, why = 2, 'valu->mfma'
                if ins.kind == 'valu':
                    if p.trans and not ins.trans and vw & set(ins.r): need, why = max(need, 1), 'trans->valu'
                    if ('permlane' in ins.op or ins.dpp) and vw & set(ins.r): need, why = 2, 'valu->permlane/dpp'
                    if ('readfirstlane' in ins.op or 'readlane' in ins.op) and vw & set(ins.r): need, why = max(need, 1), 'valu->readlane'
                    rs = set(ins.r)
                    if ins.op.startswith('v_cndmask') and len(ins.ops) == 4: pass
                    if sw & rs: need, why = 2, 'valu sgpr->valu'
                if ins.kind == 'vmem' and sw & set(ins.r): need, why = 5, 'valu sgpr->vmem'
            if p.kind == 'mfma':
                big = 8 if p.passes == 4 else 12
                if ins.kind == 'mfma':
                    if pw & (set(ins.A) | set(ins.B)): need, why = big, 'mfma D->A/B'
                    elif pw & set(ins.C) and not (p.w == ins.C and p.passes == ins.passes): need, why = big - 2, 'mfma D->C partial'
                elif ins.kind in ('valu', 'vmem', 'ds'):
                    if pw & touched: need, why = big, 'mfma D->use'
                    elif ins.kind == 'valu' and set(p.C) & set(ins.w): need, why = (3 if p.passes == 4 else 7), 'mfma C WAR'
            if p.kind == 'salu' and ('s', 'm0') in pw and ins.kind == 'vmem' and ins.lds: need, why = 1, 'm0->dma'
            if p.kind == 'vmem' and getattr(p, 'store', False) and len(p.data) > 2 and ins.kind in ('valu', 'mfma') and set(p.data) & set(ins.w): need, why = 2, 'store data WAR'
            if p.kind == 'ds' and p.op.startswith('ds_write') and ins.kind in ('valu', 'mfma') and set(p.r) & set(ins.w) and len(p.r) > 3: need, why = 2, 'ds_write data WAR'
            if need > d: err(f'{why} needs {need} has {d} (prod {p.render()})', ins, k)
            d += p.slots()
        hist.append(ins)
        if len(hist) > 40: hist.pop(0)
        for (p, rk) in ds_q:
            if set(p.w) & touched: err(f'uses pending ds dest of {p.render()}', ins, k)
        for (p, rk) in vm_q:
            if set(p.w) & touched: err(f'uses pending vmem dest of {p.render()}', ins, k)
        if sm_pending & touched: err('uses pending smem dest', ins, k)
        if ins.kind == 'smem': sm_pending |= set(ins.w)
        if ins.kind == 'wait':
            t = ins.render()
            m = re.search(r'vmcnt\((\d+)\)', t)
            if m:
                n = int(m.group(1))
                while len(vm_q) > n:
                    p, rk = vm_q.pop(0)
                    if rk is not None and not any(x[1] == rk for x in vm_q) and content[rk[0]]['ver'] == rk[1]:
                        content[rk[0]]['state'] = 1
            m = re.search(r'lgkmcnt\((\d+)\)', t)
            if m:
                n = int(m.group(1))
                if n == 0: sm_pending = set()
                while len(ds_q) > n:
                    p, rk = ds_q.pop(0)
                    if rk is not None:
                        if p.op.startswith('ds_write'):
                            if not any(x[1] == rk for x in ds_q): content[rk[0]]['state'] = 1
                        elif not any(x[1] is not None and x[1][0] == rk[0] for x in ds_q): readers[rk[0]] = 2
        if ins.kind == 'barrier':
            for c in content.values():
                if c['state'] == 1: c['state'] = 2
            for r in readers:
                if readers[r] == 2: readers[r] = 0
        if ins.kind == 'ds':
            rk = None
            if ins.region is not None:
                rk = (ins.region, ins.ver + ctx[ins.verkind])
                if ins.op.startswith('ds_write'):
                    st = readers.get(ins.region, 0)
                    if st == 1 or (st == 2 and ins.shared): err(f'LDS WAR on {rk}', ins, k)
                    content[ins.region] = dict(ver=rk[1], state=0)
                else:
                    c = content.get(ins.region)
                    if c is None or c['ver'] != rk[1]: err(f'region {rk} holds {c}', ins, k)
                    elif c['state'] < (2 if ins.shared else 1): err(f'region {rk} not ready state {c["state"]}', ins, k)
                    readers[ins.region] = 1
            ds_q.append((ins, rk))
        if ins.kind == 'vmem':
            rk = None
            if ins.region is not None and ins.lds:
                rk = (ins.region, ins.ver + ctx[ins.verkind])
                st = readers.get(ins.region, 0)
                if st == 1 or (st == 2 and ins.shared): err(f'LDS WAR on {rk}', ins, k)
                content[ins.region] = dict(ver=rk[1], state=0)
            vm_q.append((ins, rk))
            if len(vm_q) > 63: err('vmcnt overflow (informational)', ins, k)
    return errs
```

```python
import sys, os
sys.path.insert(0, os.path.dirname(os.path.abspath(__file__)))
from asmlib import I, W, resolve_waits, check

NAME = 'standalone__gqa_softmax__near_ridge'
QSIZE = 96468992; KSIZE = 67108864
CSCALE = 0x3e0293ee
LIMIT = 0x5f800000

class Cfg:
    NT = 6
    pkmul = 1
    nt_q = 1; nt_o = 1; nt_kv = 0
    timing = 0
    force_fb = 0
    def __init__(self, **kw):
        for k, v in kw.items():
            assert hasattr(self, k), k
            setattr(self, k, v)

def gen(c):
    NT = c.NT; NB = {6: 4, 4: 6}[NT]
    MF = 'v_mfma_f32_16x16x32_bf16'
    KA = [2, 3, 4, 5]; VA = [6, 7, 8, 9]; QA = [10, 11, 12, 13]; QD = [14, 15, 16, 17]
    KD, VD, ST, ACC, RL = 18, 19, 20, 21, 22
    T0 = 28
    S0, P0, O0 = 40, 56, 64
    aQ, aK, aV, aL, aONE = 0, 96, 160, 224, 248
    v = lambda b, n=1: f'v{b}' if n == 1 else f'v[{b}:{b+n-1}]'
    a = lambda b, n=1: f'a{b}' if n == 1 else f'a[{b}:{b+n-1}]'
    Sr = lambda t, kt: S0 + 8*(t % 2) + 4*kt
    Pr = lambda t: P0 + 4*(t % 2)
    Or = lambda t, db=0: O0 + 32*t + 4*db
    Qr = lambda t, ks: aQ + 16*t + 4*ks
    Kr = lambda s, kt, ks: aK + 32*(s % 2) + 16*kt + 4*ks
    Vr = lambda s, db: aV + 32*(s % 2) + 4*db
    Lr = lambda t: aL + 4*t
    sQ, sK, sV, sO = 4, 8, 12, 16
    srd = lambda b: f's[{b}:{b+3}]'
    sC, sLIM, sKV, sKVn, sQn, sQen, sQc, sQec, sQG, sQM, sQM0, sOb, sOt, sIT, sFLG, sW2K, sWNT, sSLOT, sXCD, sMID, sW = range(20, 41)
    t0, t1, t2, t3, t4 = 41, 42, 43, 44, 45
    LK, LV, LQ = 0, 32768, 65536
    LDS = LQ + 4 * NT * 4096
    ntq = ' nt' if c.nt_q else ''; nto = ' nt' if c.nt_o else ''; ntkv = ' nt' if c.nt_kv else ''

    def params():
        o = [f's_lshl_b32 s{t0}, s{sIT}, 5', f's_add_u32 s{t0}, s{t0}, s{sSLOT}']
        if NT == 6:
            o += [f's_lshr_b32 s{t1}, s{t0}, 1', f's_and_b32 s{t2}, s{t0}, 1', f's_mul_i32 s{t3}, s{t2}, 23', f's_add_u32 s{t2}, s{t3}, 23']
        else:
            o += [f's_mul_i32 s{t1}, s{t0}, 43691', f's_lshr_b32 s{t1}, s{t1}, 17', f's_mul_i32 s{t2}, s{t1}, 3', f's_sub_u32 s{t2}, s{t0}, s{t2}',
                  f's_mul_i32 s{t4}, s{t2}, 15', f's_min_u32 s{t3}, s{t2}, 1', f's_add_u32 s{t3}, s{t3}, s{t4}', f's_add_u32 s{t2}, s{t4}, 16']
        o += [f's_lshl_b32 s{t1}, s{t1}, 3', f's_add_u32 s{t1}, s{t1}, s{sXCD}', f's_lshl_b32 s{sKVn}, s{t1}, 17', f's_mul_i32 s{t1}, s{t1}, 46',
              f's_add_u32 s{t3}, s{t3}, s{sWNT}', f's_add_u32 s{t3}, s{t3}, s{t1}', f's_lshl_b32 s{sQn}, s{t3}, 12',
              f's_add_u32 s{t2}, s{t2}, s{t1}', f's_lshl_b32 s{t2}, s{t2}, 12', f's_min_u32 s{sQen}, s{t2}, {QSIZE}']
        return [I(x) for x in o]
    def advance():
        return [I(f's_mov_b32 s{sQc}, s{sQn}'), I(f's_mov_b32 s{sQec}, s{sQen}'), I(f's_add_u32 s{sIT}, s{sIT}, 1')] + params() + \
               [I(f's_mov_b32 s{sQG}, s{sQn}'), I(f's_mov_b32 s{sQ+2}, s{sQen}'), I(f's_mov_b32 s{sQM}, s{sQM0}')]

    def kv_dma(which, slot, ver):
        base, vd, sr = (LK, KD, sK) if which == 'K' else (LV, VD, sV)
        m0 = I(f's_add_u32 m0, s{sW2K}, {base + slot*8192}')
        ld = [I(f'buffer_load_dwordx4 v{vd}, {srd(sr)}, s{sKV} offen offset:{1024*i}{ntkv} lds'.replace(' offset:0 ', ' '), region=(which, slot), ver=ver) for i in range(2)]
        return m0, ld
    def q_dma(tq, i, ver):
        return I(f'buffer_load_dwordx4 v{QD[i]}, {srd(sQ)}, s{sQG} offen offset:{1024*i}{ntq} lds'.replace(' offset:0 ', ' '),
                 region=('Q', tq), ver=ver, verkind='blk', shared=False)
    def k_read(s, kt, ks):
        return I(f'ds_read_b128 {a(Kr(s, kt, ks), 4)}, v{KA[ks]} offset:{(s % 4)*8192 + 1024*kt}', region=('K', s % 4), ver=s)
    def v_read(s, db, h):
        return I(f'ds_read_b64_tr_b16 {a(Vr(s, db) + 2*h, 2)}, v{VA[db//2]} offset:{(s % 4)*8192 + 1024*h + 8*(db % 2)}', region=('V', s % 4), ver=s)
    def q_read(t, ks, ver):
        return I(f'ds_read_b128 {a(Qr(t, ks), 4)}, v{QA[ks]} offset:{4096*t}', region=('Q', t), ver=ver, verkind='blk', shared=False)

    def qk(s, t):
        return [I(f'{MF} {v(Sr(t, kt), 4)}, {a(Kr(s, kt, ks), 4)}, {a(Qr(t, ks), 4)}, {"0" if ks == 0 else v(Sr(t, kt), 4)}') for kt in range(2) for ks in range(4)]
    def pv(s, t, first):
        o = [I(f'{MF} {a(Lr(t), 4)}, {a(aONE, 4)}, {v(Pr(t), 4)}, {"0" if first else a(Lr(t), 4)}')]
        o += [I(f'{MF} {v(Or(t, db), 4)}, {a(Vr(s, db), 4)}, {v(Pr(t), 4)}, {"0" if first else v(Or(t, db), 4)}') for db in range(8)]
        return o
    def sm(t):
        e = [Sr(t, 0) + i for i in range(4)] + [Sr(t, 1) + i for i in range(4)]
        mul = [I(f'v_mul_f32 v{r}, s{sC}, v{r}') for r in e]
        ex = [I(f'v_exp_f32 v{r}, v{r}') for r in e]
        cv = [I(f'v_cvt_pk_bf16_f32 v{Pr(t)+i}, v{e[2*i]}, v{e[2*i+1]}') for i in range(4)]
        return mul, ex, cv
    PAT = {7: 'D m0', 8: 'e0', 9: 'm1 m2', 10: 'D m3', 11: 'e1', 12: 'e2', 13: 'D m4', 14: 'e3', 15: 'e4', 16: 'D m5',
           0: 'm6 m7', 1: 'e5', 2: 'c0 c1', 3: 'e6', 4: 'e7', 5: 'c2 c3', 6: 'F'}
    XTRA = [2, 9, 0, 5]
    def epilogue(t):
        o = [I(f'v_accvgpr_read_b32 v{RL+1}, {a(Lr(t))}'), I(f's_add_u32 s{sOt}, s{sOb}, {4096*t}'), I(f'v_rcp_f32 v{RL}, v{RL+1}'), I('s_nop 0'),
             I(f'v_max3_f32 v{ACC}, v{ACC}, v{RL}, v{RL+1}')]
        for dp in range(4):
            b = Or(t, 2*dp)
            if c.pkmul: o += [I(f'v_pk_mul_f32 {v(b+2*i, 2)}, {v(b+2*i, 2)}, {v(RL, 2)} op_sel_hi:[1,0]') for i in range(4)]
            else: o += [I(f'v_mul_f32 v{b+i}, v{RL}, v{b+i}') for i in range(8)]
            o += [I(f'v_cvt_pk_bf16_f32 v{b+i}, v{b+2*i}, v{b+2*i+1}') for i in range(4)]
            o += [I(f'buffer_store_dwordx4 {v(b, 4)}, v{ST}, {srd(sO)}, s{sOt} offen offset:{64*dp}{nto}'.replace(' offset:0', ''))]
        return o
    def flagit():
        cmp = I(f'v_cmp_nge_f32 vcc, s{sLIM}, v{ACC}') if not c.force_fb else I(f'v_cmp_eq_u32 vcc, v{ACC}, v{ACC}')
        return [cmp, I(f'v_mov_b32 v{ACC}, 0'), I('s_cmp_lg_u64 vcc, 0'), I(f's_cselect_b32 s{t0}, 1, 0'),
                I(f's_lshl_b32 s{t0}, s{t0}, s{sIT}'), I(f's_or_b32 s{sFLG}, s{sFLG}, s{t0}')]

    def step(s, kind):
        sabs = {'first': 0, 'mid': 4, 'last': 12}[kind] + s
        gaps = []
        for t in range(NT):
            tp = (t - 1) % NT; sp = s if t > 0 else s - 1
            first = (sabs == 0 and t > 0) or (sabs == 1 and t == 0)
            m = qk(s, t) + pv(sp, tp, first)
            cur = sm(t); prv = sm(tp)
            for g in range(17):
                d = dict(m=m[g], pre=[], v=[], post=[], ds=False, free=False, u=t, g=g)
                src = cur if g >= 7 else prv
                for tok in PAT[g].split():
                    if tok == 'D': d['ds'] = True
                    elif tok == 'F': d['free'] = True
                    else: d['v'].append(src['mec'.index(tok[0])][int(tok[1])])
                gaps.append(d)
        G = lambda u, g: gaps[u*17 + g]
        G(0, 5)['pre'].append(W([(('K', (s+1) % 4), s+1, 'step'), (('V', (s+1) % 4), s+1, 'step')], lgkm=0))
        G(0, 6)['pre'].append(I('s_barrier'))
        reads = [k_read(s+1, kt, ks) for kt in range(2) for ks in range(4)] + [v_read(s+1, db, h) for db in range(8) for h in range(2)]
        per = 24 // NT
        slots = []
        for u in range(NT):
            sl = [G(u, g) for g in range(7, 17) if G(u, g)['ds']]
            ex = [G(u, 9)] + ([G(u+1, 2), G(u+1, 0)] if u + 1 < NT else [G(u, 8), G(u, 11)])
            sl += ex[:per - len(sl)]
            slots += sorted(sl, key=lambda d: d['u']*17 + d['g'])
        for d, r in zip(slots, reads): d['pre'].append(r)
        if sabs == 15:
            for t in range(NT):
                for ks, g in enumerate((8, 11, 12, 14)): G(t, g)['pre'].append(q_read(t, ks, 1))
        last = G(NT-1, 16)
        nlast = sum(1 for d in gaps[(NT-1)*17:] for x in d['pre'] if x.kind == 'ds')
        last['pre'].insert(0, I(f's_waitcnt lgkmcnt({nlast - sum(1 for x in last["pre"] if x.kind == "ds")})'))
        heavy = []
        for which in 'KV':
            m0, ld = kv_dma(which, s % 4, s + 4)
            heavy += [(m0, ld[0]), (None, ld[1])]
        salu = []
        qsteps = range(0, 12) if NT == 6 else range(4, 12)
        if sabs in qsteps:
            tq = (sabs - qsteps[0]) // 2
            i0 = 2 * (s % 2)
            reg = tq if kind != 'mid' else ('mid', tq)
            heavy += [(I(f's_mov_b32 m0, s{sQM}'), q_dma(reg, i0, 1)), (None, q_dma(reg, i0 + 1, 1))]
        pos = [G(u, 6) for u in range(1, NT)] + [G(u, 2) for u in range(1, NT) if not G(u, 2)['pre']] + [G(u, 0) for u in range(1, NT) if not G(u, 0)['pre']]+ [G(u, 5) for u in range(1, NT)]
        pos = sorted(pos[:len(heavy)], key=lambda d: d['u']*17 + d['g'])
        lastpos = 0
        for d, (m0, ld) in zip(pos, heavy):
            k = d['u']*17 + d['g']
            if m0 is not None:
                j = k - 1
                while gaps[j]['pre']:
                    j -= 1
                assert j > lastpos
                gaps[j]['pre'].append(m0)
            d['pre'].append(ld); lastpos = k
        post = []
        if sabs + (4 if kind == 'mid' and False else 0) != 11 or True:
            post.append(I(f's_add_u32 s{sKV}, s{sKV}, 8192'))
        if sabs in qsteps and s % 2 == 1:
            post += [I(f's_add_u32 s{sQG}, s{sQG}, 4096'), I(f's_add_u32 s{sQM}, s{sQM}, 4096')]
        j = lastpos + 1
        for x in post:
            while gaps[j]['pre']: j += 1
            gaps[j]['pre'].append(x)
        pre = []
        if sabs == 12: pre = [I(f's_mov_b32 s{sKV}, s{sKVn}')]
        if sabs == 13: pre = [I(f's_mov_b32 s{sOb}, s{sQc}'), I(f's_mov_b32 s{sO+2}, s{sQec}')] + advance()
        if kind == 'first' and s == 3: pre = [I(f's_mov_b32 s{sMID}, 2')]
        if kind == 'mid' and s == 3: pre = [I(f's_sub_u32 s{sMID}, s{sMID}, 1')]
        j = 0
        for x in pre:
            while gaps[j]['pre']: j += 1
            gaps[j]['pre'].append(x)
        if sabs == 15:
            for t in range(NT - 2): G(t + 2, 6)['post'] += epilogue(t)
        if sabs == 0:
            G(0, 4)['post'] += epilogue(NT - 2)
            G(1, 6)['post'] += epilogue(NT - 1) + flagit()
        out = []
        for d in gaps:
            out.append(d['m']); out += d['pre']
            if not d['pre'] and not d['v'] and not d['post']: out.append(I('s_nop 0'))
            out += d['v']; out += d['post']
        return out

    init = [I(x) for x in f"""
s_cmp_ge_u32 s2, 256
s_cbranch_scc1 L_end
s_load_dwordx4 s[48:51], s[0:1], 0
s_load_dwordx4 s[52:55], s[0:1], 16
v_lshrrev_b32 v1, 6, v0
v_and_b32 v0, 63, v0
s_and_b32 s{sXCD}, s2, 7
v_readfirstlane_b32 s{sW}, v1
s_lshr_b32 s{sSLOT}, s2, 3
s_mov_b32 s{sIT}, 0
s_mov_b32 s{sFLG}, 0
s_mov_b32 s{sC}, {CSCALE}
s_mov_b32 s{sLIM}, {LIMIT}
s_lshl_b32 s{sW2K}, s{sW}, 11
s_mul_i32 s{sWNT}, s{sW}, {NT}
s_lshl_b32 s{sQM0}, s{sWNT}, 12
s_add_u32 s{sQM0}, s{sQM0}, {LQ}
""".strip().split('\n')]
    init += params()
    m, g = T0, T0 + 1
    x, y, z = T0 + 2, T0 + 3, T0 + 4
    init += [I(x_) for x_ in f"""
v_and_b32 v{m}, 15, v0
v_lshrrev_b32 v{g}, 4, v0
v_xor_b32 v{x}, v{m}, v{g}
v_lshlrev_b32 v{x}, 4, v{x}
v_lshl_add_u32 v{QD[0]}, v{g}, 8, v{x}
v_xor_b32 v{QD[1]}, 64, v{QD[0]}
v_xor_b32 v{QD[2]}, 0x80, v{QD[0]}
v_xor_b32 v{QD[3]}, 0xc0, v{QD[0]}
s_lshl_b32 s{t0}, s{sW}, 6
v_xor_b32 v{KD}, s{t0}, v{QD[0]}
v_add_u32 v{KD}, s{sW2K}, v{KD}
v_lshlrev_b32 v{y}, 2, v{g}
v_xor_b32 v{y}, v{y}, v{m}
v_lshlrev_b32 v{y}, 4, v{y}
v_lshl_add_u32 v{VD}, v{g}, 8, v{y}
v_add_u32 v{VD}, s{sW2K}, v{VD}
s_waitcnt lgkmcnt(0)
s_mov_b32 s{sQ}, s48
s_mov_b32 s{sQ+1}, s49
s_mov_b32 s{sQ+2}, s{sQen}
s_mov_b32 s{sQ+3}, 0x20000
s_mov_b32 s{sK}, s50
s_mov_b32 s{sK+1}, s51
s_mov_b32 s{sK+2}, {KSIZE}
s_mov_b32 s{sK+3}, 0x20000
s_mov_b32 s{sV}, s52
s_mov_b32 s{sV+1}, s53
s_mov_b32 s{sV+2}, {KSIZE}
s_mov_b32 s{sV+3}, 0x20000
s_mov_b32 s{sO}, s54
s_mov_b32 s{sO+1}, s55
s_mov_b32 s{sO+2}, 0
s_mov_b32 s{sO+3}, 0x20000
s_mov_b32 s{sOb}, 0
s_mov_b32 s{sKV}, s{sKVn}
s_mov_b32 s{sQG}, s{sQn}
s_mov_b32 s{sQM}, s{sQM0}
""".strip().split('\n')]
    def pro_kv(tile):
        o = []
        for which in 'KV':
            m0, ld = kv_dma(which, tile, tile)
            o += [m0, I('s_nop 0')] + ld
        return o + [I(f's_add_u32 s{sKV}, s{sKV}, 8192')]
    def pro_q(t):
        return [I(f's_mov_b32 m0, s{sQM}'), I(f's_add_u32 s{sQM}, s{sQM}, 4096')] + [q_dma(t, i, 0) for i in range(4)] + [I(f's_add_u32 s{sQG}, s{sQG}, 4096')]
    init += pro_kv(0)
    for t in range(NT): init += pro_q(t)
    for tile in (1, 2, 3): init += pro_kv(tile)
    init += [I(x_) for x_ in f"""
v_lshl_add_u32 v{y}, v{m}, 8, v{x}
v_add_u32 v{QA[0]}, s{sQM0}, v{y}
v_xor_b32 v{QA[1]}, 64, v{QA[0]}
v_xor_b32 v{QA[2]}, 0x80, v{QA[0]}
v_xor_b32 v{QA[3]}, 0xc0, v{QA[0]}
v_and_b32 v{z}, 12, v{m}
v_lshl_add_u32 v{KA[0]}, v{z}, 8, v{y}
v_xor_b32 v{KA[1]}, 64, v{KA[0]}
v_xor_b32 v{KA[2]}, 0x80, v{KA[0]}
v_xor_b32 v{KA[3]}, 0xc0, v{KA[0]}
v_lshlrev_b32 v{y}, 4, v{m}
v_lshl_add_u32 v{y}, v{z}, 6, v{y}
v_lshl_add_u32 v{y}, v{g}, 11, v{y}
v_add_u32 v{VA[0]}, {LV}, v{y}
v_xor_b32 v{VA[1]}, 64, v{VA[0]}
v_xor_b32 v{VA[2]}, 0x80, v{VA[0]}
v_xor_b32 v{VA[3]}, 0xc0, v{VA[0]}
v_lshlrev_b32 v{y}, 4, v{g}
v_lshl_add_u32 v{ST}, v{m}, 8, v{y}
v_and_b32 v{y}, 3, v{m}
v_cmp_eq_u32 vcc, 0, v{y}
v_mov_b32 v{y}, 0x3f803f80
v_mov_b32 v{ACC}, 0
v_cndmask_b32 v{y}, 0, v{y}, vcc
v_accvgpr_write_b32 a{aONE}, v{y}
v_accvgpr_write_b32 a{aONE+1}, v{y}
v_accvgpr_write_b32 a{aONE+2}, v{y}
v_accvgpr_write_b32 a{aONE+3}, v{y}
""".strip().split('\n')]
    init += advance()
    init += [W([(('K', 0), 0, 'step'), (('V', 0), 0, 'step'), (('Q', NT-1), 0, 'blk')]), I('s_barrier')]
    init += [k_read(0, kt, ks) for kt in range(2) for ks in range(4)]
    init += [q_read(t, ks, 0) for t in range(NT) for ks in range(4)]
    init += [v_read(0, db, h) for db in range(8) for h in range(2)]
    init += [I('s_waitcnt lgkmcnt(0)')]

    first = [I('.p2align 6'), I('L_first:')] + [x_ for s in range(4) for x_ in step(s, 'first')]
    mid = [I('L_mid:')] + [x_ for s in range(4) for x_ in step(s, 'mid')] + [I(f's_cmp_lg_u32 s{sMID}, 0'), I('s_cbranch_scc1 L_mid')]
    last = [x_ for s in range(4) for x_ in step(s, 'last')] + [I(f's_cmp_le_u32 s{sIT}, {NB}'), I('s_cbranch_scc1 L_first')]
    prv = sm(NT - 1)
    tail = []
    for g_ in range(7):
        for tok in PAT[g_].split():
            if tok not in 'DF':
                tail.append(prv['mec'.index(tok[0])][int(tok[1])])
                if tok[0] == 'e': tail.append(I('s_nop 0'))
    tail += [I('s_nop 1')] + pv(3, NT - 1, False) + epilogue(NT - 2) + epilogue(NT - 1) + flagit()

    fb = []
    F = lambda txt: fb.extend(I(l) for l in txt.strip().split('\n'))
    fQ, fK, fS, fP, fV, fO, fL, fM, fK2, fVD = 64, 80, 112, 120, 124, 160, 192, 196, 24, 25
    F(f"""
s_lshr_b32 s{sFLG}, s{sFLG}, 2
s_cmp_eq_u32 s{sFLG}, 0
s_cbranch_scc1 L_end
s_waitcnt vmcnt(0) lgkmcnt(0)
s_mov_b32 s{sIT}, 0
s_sub_u32 s{t0}, s{sQM0}, {LV}
v_add_u32 v{VA[0]}, s{t0}, v{VA[0]}
v_add_u32 v{VA[1]}, s{t0}, v{VA[1]}
v_add_u32 v{VA[2]}, s{t0}, v{VA[2]}
v_add_u32 v{VA[3]}, s{t0}, v{VA[3]}
v_subrev_u32 v{fVD}, s{sW2K}, v{VD}
v_and_b32 v{fK2}, 0xc00, v{ST}
v_add_u32 v{fK2}, v{fK2}, v{ST}
L_fb_blk:
s_bitcmp1_b32 s{sFLG}, s{sIT}
s_cbranch_scc0 L_fb_next""")
    fb += params()
    F(f"""
s_mov_b32 s{sQ+2}, s{sQen}
s_mov_b32 s{sO+2}, s{sQen}
s_mov_b32 s{sMID}, 0
L_fb_tile:""")
    for ks in range(4): F(f'buffer_load_dwordx4 {v(fQ+4*ks, 4)}, v{ST}, {srd(sQ)}, s{sQn} offen offset:{64*ks}')
    def fb_qk():
        for kt in range(2):
            for ks in range(4): F(f'buffer_load_dwordx4 {v(fK+16*kt+4*ks, 4)}, v{fK2}, {srd(sK)}, s{sKV} offen offset:{1024*kt+64*ks}')
        F('s_waitcnt vmcnt(0)')
        for kt in range(2):
            for ks in range(4): F(f'{MF} {v(fS+4*kt, 4)}, {v(fK+16*kt+4*ks, 4)}, {v(fQ+4*ks, 4)}, {"0" if ks == 0 else v(fS+4*kt, 4)}')
        F('s_nop 7')
    F(f"""
s_mov_b32 s{sKV}, s{sKVn}
s_mov_b32 s{t0}, 0
v_mov_b32 v{fM}, 0xff800000
L_fb_p1:""")
    fb_qk()
    for i in range(4): F(f'v_max3_f32 v{fM}, v{fM}, v{fS+2*i}, v{fS+2*i+1}')
    F(f"""
s_add_u32 s{sKV}, s{sKV}, 8192
s_add_u32 s{t0}, s{t0}, 1
s_cmp_lt_u32 s{t0}, 16
s_cbranch_scc1 L_fb_p1
v_mov_b32 v{fM+1}, v{fM}
s_nop 1
v_permlane32_swap_b32 v{fM}, v{fM+1}
s_nop 1
v_max_f32 v{fM}, v{fM}, v{fM+1}
v_mov_b32 v{fM+1}, v{fM}
s_nop 1
v_permlane16_swap_b32 v{fM}, v{fM+1}
s_nop 1
v_max_f32 v{fM}, v{fM}, v{fM+1}
s_mov_b32 s{sKV}, s{sKVn}
s_mov_b32 s{t0}, 0""")
    for i in range(36): F(f'v_mov_b32 v{fO+i}, 0')
    F('L_fb_p2:')
    for j in range(2):
        F(f's_add_u32 m0, s{sQM0}, {4096*j}\ns_add_u32 s{t1}, s{sKV}, {4096*j}')
        for i in range(4): F(f'buffer_load_dwordx4 v{fVD}, {srd(sV)}, s{t1} offen offset:{1024*i} lds')
    fb_qk()
    for db in range(8):
        for h in range(2): F(f'ds_read_b64_tr_b16 {v(fV+4*db+2*h, 2)}, v{VA[db//2]} offset:{1024*h + 8*(db % 2)}')
    for i in range(8): F(f'v_sub_f32 v{fS+i}, v{fS+i}, v{fM}')
    for i in range(8): F(f'v_mul_f32 v{fS+i}, s{sC}, v{fS+i}')
    for i in range(8): F(f'v_exp_f32 v{fS+i}, v{fS+i}')
    F('s_nop 0')
    for i in range(4): F(f'v_cvt_pk_bf16_f32 v{fP+i}, v{fS+2*i}, v{fS+2*i+1}')
    F('s_waitcnt lgkmcnt(0)\ns_nop 1')
    F(f'{MF} {v(fL, 4)}, {a(aONE, 4)}, {v(fP, 4)}, {v(fL, 4)}')
    for db in range(8): F(f'{MF} {v(fO+4*db, 4)}, {v(fV+4*db, 4)}, {v(fP, 4)}, {v(fO+4*db, 4)}')
    F(f"""
s_add_u32 s{sKV}, s{sKV}, 8192
s_add_u32 s{t0}, s{t0}, 1
s_cmp_lt_u32 s{t0}, 16
s_cbranch_scc1 L_fb_p2
s_nop 7
v_rcp_f32 v{fM}, v{fL}
s_nop 0""")
    for dp in range(4):
        b = fO + 8*dp
        for i in range(8): F(f'v_mul_f32 v{b+i}, v{fM}, v{b+i}')
        for i in range(4): F(f'v_cvt_pk_bf16_f32 v{b+i}, v{b+2*i}, v{b+2*i+1}')
        F(f'buffer_store_dwordx4 {v(b, 4)}, v{ST}, {srd(sO)}, s{sQn} offen offset:{64*dp}')
    F(f"""
s_waitcnt vmcnt(0)
s_add_u32 s{sQn}, s{sQn}, 4096
s_add_u32 s{sMID}, s{sMID}, 1
s_cmp_lt_u32 s{sMID}, {NT}
s_cbranch_scc1 L_fb_tile
L_fb_next:
s_add_u32 s{sIT}, s{sIT}, 1
s_cmp_lt_u32 s{sIT}, {NB}
s_cbranch_scc1 L_fb_blk
L_end:""")

    trace = [(x_, dict(step=0, blk=0)) for x_ in init]
    class Proxy:
        pass
    import copy
    for b in range(NB):
        for seg, s0, rep in ((first, 0, 0), (mid, 4, 0), (mid, 8, 1), (last, 12, 0)):
            for x_ in seg:
                if x_.region is not None and isinstance(x_.region[1], tuple):
                    x2 = copy.copy(x_); x2.region = ('Q', x_.region[1][1] + 2*rep); x_ = x2
                trace.append((x_, dict(step=16*b + s0, blk=b)))
    trace += [(x_, dict(step=16*NB - 4, blk=NB)) for x_ in tail]
    trace += [(x_, dict(step=0, blk=0)) for x_ in fb + fb]
    resolve_waits(trace)
    errs = check(trace)
    for e in errs[:30]: print('CHECK', e, file=sys.stderr)
    assert not errs, len(errs)
    body = '\n'.join(('' if x_.label else '    ') + x_.render() for x_ in init + first + mid + last + tail + fb)
    ref = open(f'cdna_kernels/{NAME}.s.ref').read().split('\n')
    head = [l for l in ref if l.startswith(';') and '@launch' not in l]
    doc = """; Attention forward, S^T = K.Q^T and O^T = V^T.P^T on 16x16x32 bf16 MFMAs, persistent workgroups, K/V/Q staged by LDS-DMA.
; Softmax guard: the fast path exponentiates against the stand-in reference 0 (softmax is shift invariant); every row sum l
; is checked at run time (2^-64 <= l <= 2^64) and a wave whose check fails recomputes that block with the true row
; maximum in the fallback path at the end of the kernel (L_fb_*).""".split('\n')
    txt = '\n'.join(head + [f'; @launch grid=(256,1,1) block=(256,1,1) lds={LDS}'] + doc) + f"""
.amdgcn_target "amdgcn-amd-amdhsa--gfx950"
.text
.globl {NAME}_kernel
.p2align 8
.type {NAME}_kernel,@function
{NAME}_kernel:
{body}
    s_endpgm
.section .rodata,"a"
.p2align 6
.amdhsa_kernel {NAME}_kernel
  .amdhsa_next_free_vgpr 512
  .amdhsa_next_free_sgpr 102
  .amdhsa_accum_offset 256
  .amdhsa_group_segment_fixed_size 0
  .amdhsa_kernarg_size 48
  .amdhsa_user_sgpr_count 2
  .amdhsa_user_sgpr_kernarg_segment_ptr 1
  .amdhsa_system_sgpr_workgroup_id_x 1
.end_amdhsa_kernel
"""
    return txt

if __name__ == '__main__':
    out = sys.argv[1]
    kw = {k: int(x) for k, x in (p.split('=') for p in sys.argv[2:])}
    open(out, 'w').write(gen(Cfg(**kw)))
    print('wrote', out)
```
